```python
import torch

def _softmax(x, axis=-1):
    return torch.softmax(x, dim=axis)
def _gelu(x):
    return torch.nn.functional.gelu(x, approximate="tanh")
def _silu(x):
    return torch.nn.functional.silu(x)
def _sigmoid(x):
    return torch.sigmoid(x)
def _layernorm(x, axis=-1, eps=1e-5):
    m = x.mean(dim=axis, keepdim=True)
    v = x.var(dim=axis, keepdim=True, unbiased=False)
    return (x - m) / torch.sqrt(v + eps)
def _scatter_add(tgt, idx, src, axis=0):
    return tgt.clone().index_add_(axis, idx, src)
def _segment_sum(src, seg, n):
    out = torch.zeros((n,) + src.shape[1:], dtype=src.dtype)
    return out.index_add_(0, seg, src)
def _pad(x, pw):
    flat = tuple(v for pair in reversed(pw) for v in pair)
    return torch.nn.functional.pad(x, flat)

kernel_name = 'sequential_preLN__gqa_block_cached__geglu_ffn__decode'

def setup_inputs():

    _w = (lambda a: (lambda t: t.to(torch.bfloat16) if t.is_floating_point() else t)(torch.as_tensor(a)))
    def _A_setup():
        B, Sq, D = 1, 1, 576
        Hq, Hkv, Sk, Dh = 32, 16, 65536, 128
        assert Hq % Hkv == 0, (Hq, Hkv)
        return {
            "x": _w((lambda *s: torch.randn(*s, dtype=torch.bfloat16) * 0.05)(B, Sq, D)),
            "k_cache": _w((lambda *s: torch.randn(*s, dtype=torch.bfloat16) * 3.2)(B, Hkv, Sk, Dh)),
            "v_cache": _w((lambda *s: torch.randn(*s, dtype=torch.bfloat16) * 0.4)(B, Hkv, Sk, Dh)),
            "wq": _w((lambda *s: torch.randn(*s, dtype=torch.bfloat16) * 3.2)(D, Hq * Dh) * (D ** -0.5)),
            "wo": _w((lambda *s: torch.randn(*s, dtype=torch.bfloat16) * 0.4)(Hq * Dh, D) * ((Hq * Dh) ** -0.5)),
        }
    _A_in = _A_setup()

    def _B_setup():
        B, S, D, F = 1, 1, 576, 4608
        return {
            "x": _w((lambda *s: torch.randn(*s, dtype=torch.bfloat16) * 0.05)(B, S, D)),
            "w_gate": _w((lambda *s: torch.randn(*s, dtype=torch.bfloat16) * 0.05)(D, F)),
            "w_up": _w((lambda *s: torch.randn(*s, dtype=torch.bfloat16) * 0.05)(D, F)),
            "w_down": _w((lambda *s: torch.randn(*s, dtype=torch.bfloat16) * 0.05)(F, D)),
        }
    _B_in = _B_setup()

    return {
        "A_x": _A_in["x"],
        "A_k_cache": _A_in["k_cache"],
        "A_v_cache": _A_in["v_cache"],
        "A_wq": _A_in["wq"],
        "A_wo": _A_in["wo"],
        "B_x": _B_in["x"],
        "B_w_gate": _B_in["w_gate"],
        "B_w_up": _B_in["w_up"],
        "B_w_down": _B_in["w_down"],
    }

def reference(A_x, A_k_cache, A_v_cache, A_wq, A_wo, B_x, B_w_gate, B_w_up, B_w_down):
    def _A_ref(x, k_cache, v_cache, wq, wo):
        B, Sq, D = x.shape
        Hq, Dh = 32, 128
        Hkv = k_cache.shape[1]
        rep = Hq // Hkv
        q = (lambda x, *d: x.permute(*d))((x @ wq).reshape(B, Sq, Hq, Dh), 0, 2, 1, 3)
        k = (lambda x, n, axis: torch.repeat_interleave(x, n, dim=axis))(k_cache, rep, axis=1)
        v = (lambda x, n, axis: torch.repeat_interleave(x, n, dim=axis))(v_cache, rep, axis=1)
        scores = torch.einsum("bhqd,bhkd->bhqk", q, k) * (Dh ** -0.5)
        p = _softmax(scores, axis=-1)
        o = torch.einsum("bhqk,bhkd->bhqd", p, v)
        return (lambda x, *d: x.permute(*d))(o, 0, 2, 1, 3).reshape(B, Sq, Hq * Dh) @ wo

    def _B_ref(x, w_gate, w_up, w_down):
        return (_gelu(x @ w_gate) * (x @ w_up)) @ w_down

    x = A_x
    h = x + _A_ref(_layernorm(x, axis=-1), A_k_cache, A_v_cache, A_wq, A_wo)
    h2 = h + _B_ref(_layernorm(h, axis=-1), B_w_gate, B_w_up, B_w_down)
    return h2
```

```python
import sys
KN = "sequential_preLN__gqa_block_cached__geglu_ffn__decode"
def header(grid, block, lds):
    return f"""; @launch grid=({grid},1,1) block=({block},1,1) lds={lds}
.amdgcn_target "amdgcn-amd-amdhsa--gfx950"
.text
.globl {KN}_kernel
.p2align 8
.type {KN}_kernel,@function
{KN}_kernel:
"""
def footer(vgpr, sgpr=102, acc=None):
    acc = acc or ((vgpr+3)//4*4)
    return f"""
.section .rodata,"a"
.p2align 6
.amdhsa_kernel {KN}_kernel
  .amdhsa_next_free_vgpr {vgpr}
  .amdhsa_next_free_sgpr {sgpr}
  .amdhsa_accum_offset {min(acc,256)}
  .amdhsa_group_segment_fixed_size 0
  .amdhsa_kernarg_size 96
  .amdhsa_user_sgpr_count 2
  .amdhsa_user_sgpr_kernarg_segment_ptr 1
  .amdhsa_system_sgpr_workgroup_id_x 1
.end_amdhsa_kernel
"""
def gen(nwg=256, nw=8, depth=8, mode="reg", flags="", pattern="contig", gran=0, lds=0, order="kv", headmap="div"):
    per_wg = (256<<20)//nwg
    step = nw*depth*1024
    L = []
    a = L.append
    a(f"s_cmp_ge_u32 s2, {nwg}")
    a("s_cbranch_scc1 L_end")
    a("s_memrealtime s[20:21]")
    a("s_load_dwordx4 s[4:7], s[0:1], 8")
    a("s_load_dwordx2 s[16:17], s[0:1], 88")
    a("v_lshrrev_b32 v1, 6, v0")
    a("s_nop 0")
    a("v_readfirstlane_b32 s3, v1")
    a("v_and_b32 v2, 63, v0")
    a("v_lshlrev_b32 v2, 4, v2")
    a("s_waitcnt lgkmcnt(0)")
    a("s_mov_b32 s8, s4"); a("s_and_b32 s9, s5, 0xffff"); a("s_mov_b32 s10, 0x10000000"); a("s_mov_b32 s11, 0x20000")
    a("s_mov_b32 s12, s6"); a("s_and_b32 s13, s7, 0xffff"); a("s_mov_b32 s14, 0x10000000"); a("s_mov_b32 s15, 0x20000")
    wpg = nwg//16
    if headmap == "div":
        a(f"s_lshr_b32 s24, s2, {wpg.bit_length()-1}"); a(f"s_and_b32 s25, s2, {wpg-1}")
    else:
        a("s_and_b32 s24, s2, 15"); a("s_lshr_b32 s25, s2, 4")
    a("s_lshl_b32 s24, s24, 24")
    if pattern == "contig":
        a(f"s_mul_i32 s25, s25, {per_wg}")
        adv = step
    else:
        a(f"s_mul_i32 s25, s25, {step}")
        adv = step*wpg
    a("s_add_u32 s24, s24, s25")
    a(f"s_mul_i32 s25, s3, {depth*1024}")
    a("s_add_u32 s24, s24, s25")
    niter = per_wg//step
    if mode == "lds":
        a(f"s_mul_i32 s26, s3, {depth*1024}")
    def load(d, srd, soff):
        if mode == "reg":
            r = 8+4*d
            a(f"buffer_load_dwordx4 v[{r}:{r+3}], v{3+d//4}, {srd}, {soff} offen offset:{(d%4)*1024} {flags}")
        else:
            a(f"s_add_u32 m0, s26, {(d//4)*4096}")
            a("s_nop 0")
            a(f"buffer_load_dwordx4 v{3+d//4}, {srd}, {soff} offen offset:{(d%4)*1024} {flags} lds")
    for j in range((depth+3)//4):
        a(f"v_add_u32 v{3+j}, {j*4096}, v2")
    if order == "kv":
        phases = [("s[8:11]", niter), ("s[12:15]", niter)]
        a("s_mov_b32 s27, s24")
        for d in range(depth): load(d, "s[8:11]", "s27")
        for pi, (srd, n) in enumerate(phases):
            cnt = n-1 if pi == 0 else n
            if pi == 1: a(f"s_sub_u32 s27, s24, {adv}")
            a(f"s_mov_b32 s28, {cnt}")
            a(f"L_loop{pi}:")
            a(f"s_add_u32 s27, s27, {adv}")
            for d in range(depth):
                a(f"s_waitcnt vmcnt({depth-1})")
                load(d, srd, "s27")
            a("s_sub_u32 s28, s28, 1")
            a("s_cmp_lg_u32 s28, 0")
            a(f"s_cbranch_scc1 L_loop{pi}")
            if pi == 0: a("s_memrealtime s[22:23]")
    else:
        h = depth//2
        raise NotImplementedError
    a("s_waitcnt vmcnt(0)")
    a("s_memrealtime s[30:31]")
    a("s_waitcnt lgkmcnt(0)")
    a("s_barrier")
    a("s_cmp_lg_u32 s3, 0")
    a("s_cbranch_scc1 L_end")
    a("s_memrealtime s[30:31]")
    a("s_waitcnt lgkmcnt(0)")
    a("s_add_u32 s16, s16, 0x20000000"); a("s_addc_u32 s17, s17, 0")
    a("s_lshl_b32 s25, s2, 7")
    a("v_mov_b32 v1, s25")
    a("v_mov_b32 v4, s20"); a("v_mov_b32 v5, s21"); a("v_mov_b32 v6, s22"); a("v_mov_b32 v7, s23")
    a("global_store_dwordx4 v1, v[4:7], s[16:17]")
    a("v_mov_b32 v8, s30"); a("v_mov_b32 v9, s31")
    a("global_store_dwordx2 v1, v[8:9], s[16:17] offset:16")
    a("L_end:")
    a("s_endpgm")
    vg = 8+4*depth if mode == "reg" else 16
    return header(nwg, nw*64, lds) + "\n".join(L) + footer(max(vg, 16))
if __name__ == "__main__":
    import itertools
    cfgs = {}
    for nw, depth in [(4,8),(4,16),(8,4),(8,8),(8,16),(16,4),(16,8)]:
        for fl in ["", "nt"]:
            cfgs[f"reg_w{nw}_d{depth}_{fl}"] = dict(nw=nw, depth=depth, flags=fl, lds=96*1024)
    for nw, depth in [(1,32),(2,32),(4,16),(4,32),(8,8),(8,16)]:
        for fl in ["", "nt"]:
            cfgs[f"lds_w{nw}_d{depth}_{fl}"] = dict(nw=nw, depth=depth, flags=fl, mode="lds", lds=max(96*1024, nw*depth*1024))
    for n, c in cfgs.items():
        open(f"bw_{n}.s", "w").write(gen(**c))
    print(" ".join(f"bw_{n}.s" for n in cfgs))
```

```python
from gen_bw import header, footer
def gen(nw=4, U=8, flags="nt", dynK=0, dynV=4, G=0, lds=96*1024, koff=0):
    nwg = 256
    ub = U*1024
    units_head = (1<<24)//ub
    waves_head = 16*nw
    L = []; a = L.append
    a(f"s_cmp_ge_u32 s2, {nwg}"); a("s_cbranch_scc1 L_end")
    a("s_memrealtime s[20:21]")
    a("s_load_dwordx4 s[4:7], s[0:1], 8")
    a("s_load_dwordx4 s[16:19], s[0:1], 80")
    a("v_lshrrev_b32 v1, 6, v0"); a("s_nop 0"); a("v_readfirstlane_b32 s3, v1")
    a("v_and_b32 v2, 63, v0")
    a("v_lshlrev_b32 v3, 4, v2")
    for j in range((U+3)//4): a(f"v_add_u32 v{200+j}, {4096*j}, v3")
    a("s_waitcnt lgkmcnt(0)")
    a("s_lshr_b32 s24, s2, 4"); a("s_and_b32 s25, s2, 15")
    a("s_lshl_b32 s26, s24, 24")
    a("s_add_u32 s8, s4, s26"); a("s_addc_u32 s9, s5, 0"); a("s_and_b32 s9, s9, 0xffff"); a("s_mov_b32 s10, 0x1000000"); a("s_mov_b32 s11, 0x20000")
    a("s_add_u32 s12, s6, s26"); a("s_addc_u32 s13, s7, 0"); a("s_and_b32 s13, s13, 0xffff"); a("s_mov_b32 s14, 0x1000000"); a("s_mov_b32 s15, 0x20000")
    def ld(i, srd, soff):
        r = 12+4*i
        a(f"buffer_load_dwordx4 v[{r}:{r+3}], v{200+i//4}, {srd}, {soff} offen offset:{(i%4)*1024} {flags}")
    first = True
    for ph, (srd, dyn16) in enumerate([("s[8:11]", dynK), ("s[12:15]", dynV)]):
        n_static = (units_head*(16-dyn16)//16)//waves_head
        dyn_base = n_static*waves_head
        n_dyn = units_head - dyn_base
        per_ctr = n_dyn//nw; assert per_ctr*nw == n_dyn
        if G:
            steps = G//(nw*ub); assert n_static % steps == 0, (n_static, steps)
            a(f"s_mul_i32 s27, s25, {steps*nw}"); a("s_add_u32 s27, s27, s3"); a(f"s_mul_i32 s27, s27, {ub}")
            a(f"s_mov_b32 s36, 0")
        else:
            a(f"s_mul_i32 s27, s25, {n_static*nw}"); a("s_add_u32 s27, s27, s3"); a(f"s_mul_i32 s27, s27, {ub}")
        a(f"s_mul_i32 s28, s24, {nw}"); a("s_add_u32 s28, s28, s3"); a(f"s_add_u32 s28, s28, {ph*256}"); a("s_lshl_b32 s28, s28, 8")
        a(f"s_mul_i32 s29, s3, {per_ctr}"); a(f"s_add_u32 s29, s29, {dyn_base}")
        a(f"s_mov_b32 s30, {n_static}")
        a(f"L_s{ph}:")
        if dyn16:
            a("s_cmp_lg_u32 s30, 1"); a(f"s_cbranch_scc1 L_n{ph}")
            a("s_mov_b32 s31, 1"); a(f"s_atomic_add s31, s[18:19], s28 glc")
            a(f"L_n{ph}:")
        for i in range(U):
            a(f"s_waitcnt vmcnt({U-1})"); ld(i, srd, "s27")
        a(f"s_add_u32 s27, s27, {nw*ub}")
        if G:
            a("s_add_u32 s36, s36, 1"); a(f"s_cmp_eq_u32 s36, {steps}"); a("s_cselect_b32 s36, 0, s36"); a(f"s_cselect_b32 s37, {15*G}, 0"); a("s_add_u32 s27, s27, s37")
        a("s_sub_u32 s30, s30, 1"); a("s_cmp_lg_u32 s30, 0"); a(f"s_cbranch_scc1 L_s{ph}")
        if dyn16:
            a(f"L_d{ph}:")
            a(f"s_waitcnt vmcnt({U-1}) lgkmcnt(0)")
            a(f"s_cmp_ge_u32 s31, {per_ctr}")
            a(f"s_cbranch_scc1 L_x{ph}")
            a("s_add_u32 s27, s31, s29"); a(f"s_mul_i32 s27, s27, {ub}")
            a("s_mov_b32 s31, 1"); a(f"s_atomic_add s31, s[18:19], s28 glc")
            for i in range(U):
                a(f"s_waitcnt vmcnt({U-1})"); ld(i, srd, "s27")
            a(f"s_branch L_d{ph}")
            a(f"L_x{ph}:")
        if ph == 0: a("s_memrealtime s[22:23]"); a("s_waitcnt lgkmcnt(0)")
    a("s_waitcnt vmcnt(0)")
    a("s_barrier")
    a("s_cmp_lg_u32 s3, 0"); a("s_cbranch_scc1 L_end")
    a("s_memrealtime s[30:31]")
    a("s_waitcnt lgkmcnt(0)")
    a("s_add_u32 s18, s18, 0x20000000"); a("s_addc_u32 s19, s19, 0")
    a("s_lshl_b32 s25, s2, 7")
    a("v_mov_b32 v1, s25")
    a("v_mov_b32 v4, s20"); a("v_mov_b32 v5, s21"); a("v_mov_b32 v6, s22"); a("v_mov_b32 v7, s23")
    a("global_store_dwordx4 v1, v[4:7], s[18:19]")
    a("v_mov_b32 v8, s30"); a("v_mov_b32 v9, s31")
    a("global_store_dwordx2 v1, v[8:9], s[18:19] offset:16")
    a("L_end:"); a("s_endpgm")
    return header(nwg, nw*64, lds) + "\n".join(L) + footer(224)
if __name__ == "__main__":
    cfgs = {}
    for nw, U in [(4,8),(2,16),(8,4),(4,16),(1,32),(8,8)]:
        cfgs[f"w{nw}u{U}_k0v8"] = dict(nw=nw, U=U, dynK=0, dynV=8)
        cfgs[f"w{nw}u{U}_k4v4"] = dict(nw=nw, U=U, dynK=4, dynV=4)
    for G in (64,128,256):
        cfgs[f"w4u8_k0v8_G{G}"] = dict(nw=4, U=8, dynK=0, dynV=8, G=G*1024)
        cfgs[f"w4u8_k4v4_G{G}"] = dict(nw=4, U=8, dynK=4, dynV=4, G=G*1024)
    cfgs[f"w4u8_k0v4"] = dict(nw=4, U=8, dynK=0, dynV=4)
    cfgs[f"w4u8_k0v0"] = dict(nw=4, U=8, dynK=0, dynV=0)
    for n, c in cfgs.items():
        open(f"b4_{n}.s", "w").write(gen(**c))
    print(" ".join(f"b4_{n}.s" for n in cfgs))
```

```python
from gen_bw import header, footer
def gen(nw=4, U=8, flags="nt", dyn16=0, ctr="dbg", perm=True, lds=96*1024, share="wave", atom="v", early=False, count=False, G=0):
    nwg = 256
    units_head = 65536//(4*U)
    waves_head = 16*nw
    n_static = (units_head*(16-dyn16)//16)//waves_head
    dyn_base = n_static*waves_head
    n_dyn = units_head - dyn_base
    ub = U*1024
    L = []; a = L.append
    a(f"s_cmp_ge_u32 s2, {nwg}"); a("s_cbranch_scc1 L_end")
    a("s_memrealtime s[20:21]")
    a("s_load_dwordx4 s[4:7], s[0:1], 8")
    a("s_load_dwordx4 s[16:19], s[0:1], 80")
    a("v_lshrrev_b32 v1, 6, v0"); a("s_nop 0"); a("v_readfirstlane_b32 s3, v1")
    a("v_and_b32 v2, 63, v0")
    a("v_lshlrev_b32 v3, 4, v2")
    if perm:
        a("v_and_b32 v4, 3, v2"); a("v_lshlrev_b32 v4, 4, v4")
        a("v_bfe_u32 v5, v2, 2, 2"); a("v_lshl_add_u32 v4, v5, 8, v4")
        a("v_lshrrev_b32 v5, 4, v2"); a("v_lshl_add_u32 v4, v5, 6, v4")
    else:
        a("v_mov_b32 v4, v3")
    for j in range((U+3)//4):
        a(f"v_add_u32 v{200+j}, {4096*j}, v3"); a(f"v_add_u32 v{210+j}, {4096*j}, v4")
    a("s_waitcnt lgkmcnt(0)")
    a("s_lshr_b32 s24, s2, 4"); a("s_and_b32 s25, s2, 15")
    a("s_lshl_b32 s26, s24, 24")
    a("s_add_u32 s8, s4, s26"); a("s_addc_u32 s9, s5, 0"); a("s_and_b32 s9, s9, 0xffff"); a("s_mov_b32 s10, 0x1000000"); a("s_mov_b32 s11, 0x20000")
    a("s_add_u32 s12, s6, s26"); a("s_addc_u32 s13, s7, 0"); a("s_and_b32 s13, s13, 0xffff"); a("s_mov_b32 s14, 0x1000000"); a("s_mov_b32 s15, 0x20000")
    if G:
        steps = G//(nw*ub); assert n_static % steps == 0
        a(f"s_mul_i32 s27, s25, {steps*nw}"); a("s_add_u32 s27, s27, s3"); a(f"s_mul_i32 s27, s27, {ub}")
        a(f"s_mov_b32 s36, 0")
    else:
        a(f"s_mul_i32 s27, s25, {n_static*nw}"); a("s_add_u32 s27, s27, s3"); a(f"s_mul_i32 s27, s27, {ub}")
    if dyn16:
        if share == "wave":
            nctr = nw; a(f"s_mul_i32 s28, s24, {nw}"); a("s_add_u32 s28, s28, s3")
            per_ctr = n_dyn//nw; assert per_ctr*nw == n_dyn
            a(f"s_mul_i32 s29, s3, {per_ctr}"); a(f"s_add_u32 s29, s29, {dyn_base}")
        else:
            a("s_mov_b32 s28, s24"); per_ctr = n_dyn; a(f"s_mov_b32 s29, {dyn_base}")
        if ctr == "dbg":
            a("s_lshl_b32 s28, s28, 2"); cb = "s[16:17]"
        else:
            a("s_lshl_b32 s28, s28, 8"); cb = "s[18:19]"
        a("v_mov_b32 v7, s28")
    def ld(i, kind, soff):
        r = 12+4*i
        srd = "s[8:11]" if kind == "K" else "s[12:15]"
        vo = (210 if kind == "K" else 200) + i//4
        a(f"buffer_load_dwordx4 v[{r}:{r+3}], v{vo}, {srd}, {soff} offen offset:{(i%4)*1024} {flags}")
    for i in range(U): ld(i, "K", "s27")
    a(f"s_mov_b32 s30, {n_static-1}")
    a("s_mov_b32 s34, 0")
    a("L_s:")
    for i in range(U):
        a(f"s_waitcnt vmcnt({U-1})"); ld(i, "V", "s27")
    a(f"s_add_u32 s27, s27, {nw*ub}")
    if G:
        a("s_add_u32 s36, s36, 1"); a(f"s_cmp_eq_u32 s36, {steps}"); a("s_cselect_b32 s36, 0, s36"); a(f"s_cselect_b32 s37, {15*G}, 0"); a("s_add_u32 s27, s27, s37")
    for i in range(U):
        a(f"s_waitcnt vmcnt({U-1})"); ld(i, "K", "s27")
    a("s_sub_u32 s30, s30, 1"); a("s_cmp_lg_u32 s30, 0"); a("s_cbranch_scc1 L_s")
    a("s_memrealtime s[22:23]")
    if dyn16:
        if early:
            a("s_mov_b32 s35, 1")
            a(f"s_atomic_add s35, {cb}, s28 glc")
        a("L_d:")
        if early:
            for i in range(U):
                a(f"s_waitcnt vmcnt({U-1})"); ld(i, "V", "s27")
            a(f"s_waitcnt vmcnt({U-1}) lgkmcnt(0)")
            a("s_mov_b32 s31, s35")
            a("s_mov_b32 s35, 1")
            a(f"s_atomic_add s35, {cb}, s28 glc")
        elif atom == "v":
            a("v_mov_b32 v8, 1")
            a("s_mov_b64 exec, 1")
            a(f"global_atomic_add v8, v7, v8, {cb} sc0 sc1")
            a("s_mov_b64 exec, -1")
            for i in range(U):
                a(f"s_waitcnt vmcnt({U})"); ld(i, "V", "s27")
            a(f"s_waitcnt vmcnt({U-1})")
            a("v_readfirstlane_b32 s31, v8")
        else:
            a("s_mov_b32 s31, 1")
            a(f"s_atomic_add s31, {cb}, s28 glc")
            for i in range(U):
                a(f"s_waitcnt vmcnt({U-1})"); ld(i, "V", "s27")
            a(f"s_waitcnt vmcnt({U-1}) lgkmcnt(0)")
        a(f"s_cmp_ge_u32 s31, {per_ctr}")
        a("s_cbranch_scc1 L_drain")
        a("s_add_u32 s34, s34, 1")
        a("s_add_u32 s31, s31, s29"); a(f"s_mul_i32 s27, s31, {ub}")
        for i in range(U):
            a(f"s_waitcnt vmcnt({U-1})"); ld(i, "K", "s27")
        a("s_branch L_d")
    else:
        for i in range(U):
            a(f"s_waitcnt vmcnt({U-1})"); ld(i, "V", "s27")
    a("L_drain:")
    a("s_waitcnt vmcnt(0)")
    if count:
        a("v_mov_b32 v8, s34"); a("v_mov_b32 v9, 0"); a("s_mov_b64 exec, 1")
        a("global_atomic_add v9, v8, s[16:17] sc1"); a("s_mov_b64 exec, -1")
    a("s_barrier")
    a("s_cmp_lg_u32 s3, 0"); a("s_cbranch_scc1 L_end")
    a("s_memrealtime s[30:31]")
    a("s_waitcnt lgkmcnt(0)")
    a("s_add_u32 s18, s18, 0x20000000"); a("s_addc_u32 s19, s19, 0")
    a("s_lshl_b32 s25, s2, 7")
    a("v_mov_b32 v1, s25")
    a("v_mov_b32 v4, s20"); a("v_mov_b32 v5, s21"); a("v_mov_b32 v6, s22"); a("v_mov_b32 v7, s23")
    a("global_store_dwordx4 v1, v[4:7], s[18:19]")
    a("v_mov_b32 v8, s30"); a("v_mov_b32 v9, s31")
    a("global_store_dwordx2 v1, v[8:9], s[18:19] offset:16")
    a("L_end:"); a("s_endpgm")
    return header(nwg, nw*64, lds) + "\n".join(L) + footer(224)
if __name__ == "__main__":
    cfgs = {}
    cfgs["w4u8_st"] = dict(nw=4, U=8)
    for G in (32,64,128,256,0):
        cfgs[f"w4u8_d4_G{G}"] = dict(nw=4, U=8, dyn16=4, ctr="ws", share="wave", atom="s", G=G*1024)
        cfgs[f"w4u8_d2_G{G}"] = dict(nw=4, U=8, dyn16=2, ctr="ws", share="wave", atom="s", G=G*1024 if G<=128 else 0)
    cfgs["w2u16_d4"] = dict(nw=2, U=16, dyn16=4, ctr="ws", share="wave", atom="s")
    cfgs["w2u12_d4"] = dict(nw=2, U=12, dyn16=4, ctr="ws", share="head", atom="s")
    cfgs["w3u8_d4"] = dict(nw=3, U=8, dyn16=4, ctr="ws", share="head", atom="s")
    cfgs["w3u8_d2"] = dict(nw=3, U=8, dyn16=2, ctr="ws", share="head", atom="s")
    cfgs["w1u32_d4"] = dict(nw=1, U=32, dyn16=4, ctr="ws", share="wave", atom="s")
    cfgs["w1u24_d4"] = dict(nw=1, U=24, dyn16=4, ctr="ws", share="wave", atom="s")
    for n, c in cfgs.items():
        open(f"b3_{n}.s", "w").write(gen(**c))
    print(" ".join(f"b3_{n}.s" for n in cfgs))
```

```python
from gen_bw import header, footer
def gen(nwg=256, blk=256, lds=0, vgpr=32, body="", pad=0):
    L = ["s_cmp_ge_u32 s2, %d" % nwg, "s_cbranch_scc1 L_end"]
    if body == "store":
        L += ["s_load_dwordx2 s[18:19], s[0:1], 88", "v_lshlrev_b32 v1, 4, v0", "s_lshl_b32 s3, s2, 13", "v_add_u32 v1, s3, v1", "s_waitcnt lgkmcnt(0)", "global_store_dwordx4 v1, v[4:7], s[18:19] sc1"]
    if body == "storep":
        L += ["s_load_dwordx2 s[18:19], s[0:1], 88", "v_lshlrev_b32 v1, 4, v0", "s_lshl_b32 s3, s2, 13", "v_add_u32 v1, s3, v1", "s_waitcnt lgkmcnt(0)", "global_store_dwordx4 v1, v[4:7], s[18:19]"]
    L += ["L_end:", "s_endpgm"] + ["s_nop 0"]*pad
    return header(nwg, blk, lds) + "\n".join(L) + footer(vgpr)
cfgs = {"min": {}, "lds96": dict(lds=96*1024), "lds135": dict(lds=135168), "v256": dict(vgpr=256), "b320": dict(blk=320), "all": dict(lds=135168, vgpr=256, blk=320),
        "all_st": dict(lds=135168, vgpr=256, blk=320, body="store"), "all_stp": dict(lds=135168, vgpr=256, blk=320, body="storep"), "one": dict(nwg=1, blk=64), "lds160": dict(lds=163840, vgpr=256, blk=320), "b1024": dict(blk=1024, vgpr=128)}
for n, c in cfgs.items(): open(f"ov_{n}.s", "w").write(gen(**c))
print(" ".join(f"ov_{n}.s" for n in cfgs))
```
